```python
import torch

def _softmax(x, axis=-1):
    return torch.softmax(x, dim=axis)
def _gelu(x):
    return torch.nn.functional.gelu(x, approximate="tanh")
def _silu(x):
    return torch.nn.functional.silu(x)
def _sigmoid(x):
    return torch.sigmoid(x)
def _layernorm(x, axis=-1, eps=1e-5):
    m = x.mean(dim=axis, keepdim=True)
    v = x.var(dim=axis, keepdim=True, unbiased=False)
    return (x - m) / torch.sqrt(v + eps)
def _scatter_add(tgt, idx, src, axis=0):
    return tgt.clone().index_add_(axis, idx, src)
def _segment_sum(src, seg, n):
    out = torch.zeros((n,) + src.shape[1:], dtype=src.dtype)
    return out.index_add_(0, seg, src)
def _pad(x, pw):
    flat = tuple(v for pair in reversed(pw) for v in pair)
    return torch.nn.functional.pad(x, flat)

kernel_name = 'standalone__mha_softmax__near_ridge'

def setup_inputs():

    _w = (lambda a: (lambda t: t.to(torch.bfloat16) if t.is_floating_point() else t)(torch.as_tensor(a)))
    B, H, Sq, Sk, D = 8, 32, 496, 512, 128
    return {
        "q": _w((lambda *s: torch.randn(*s, dtype=torch.bfloat16) * 0.8)(B, H, Sq, D)),
        "k": _w((lambda *s: torch.randn(*s, dtype=torch.bfloat16) * 0.8)(B, H, Sk, D)),
        "v": _w((lambda *s: torch.randn(*s, dtype=torch.bfloat16) * 0.05)(B, H, Sk, D)),
    }

def reference(q, k, v):
    scale = q.shape[-1] ** -0.5
    scores = torch.einsum("bhqd,bhkd->bhqk", q, k) * scale
    p = _softmax(scores, axis=-1)
    return torch.einsum("bhqk,bhkd->bhqd", p, v)
```

```python
import re
def regs_of(tok):
    tok=tok.strip().lstrip('-')
    m=re.fullmatch(r'([vas])\[(\d+):(\d+)\]',tok)
    if m: return [(m.group(1),i) for i in range(int(m.group(2)),int(m.group(3))+1)]
    m=re.fullmatch(r'([vas])(\d+)',tok)
    if m: return [(m.group(1),int(m.group(2)))]
    if tok in('vcc','m0','exec'): return [(tok,0)]
    return []
TRANS=('v_exp_f32','v_rcp_f32','v_log_f32','v_rsq_f32','v_sqrt_f32')
class I:
    def __init__(s,text,tag=None,need=None):
        s.text=text; s.tag=tag; s.need=need
        t=text.split(';')[0].strip()
        s.op=t.split()[0] if t else ''
        rest=t[len(s.op):]
        ops=[o.strip() for o in re.split(r',(?![^\[]*\])',rest)] if rest.strip() else []
        if ops: ops[-1]=ops[-1].split()[0] if ops[-1].split() else ops[-1]
        s.r=[];s.w=[]
        op=s.op
        s.kind='other'
        if op.endswith(':') or op.startswith('.'): s.kind='label'
        elif op.startswith('v_mfma'):
            s.kind='mfma'; s.w=regs_of(ops[0]); s.ab=regs_of(ops[1])+regs_of(ops[2]); s.c=regs_of(ops[3]); s.r=s.ab+s.c
        elif op.startswith('ds_read'):
            s.kind='ds'; s.w=regs_of(ops[0]); s.r=regs_of(ops[1])
        elif op.startswith('ds_write'):
            s.kind='ds'; s.r=regs_of(ops[0])+regs_of(ops[1])
        elif op.startswith('buffer_load'):
            s.kind='vm'
            if ' lds' in t: s.r=regs_of(ops[0])+regs_of(ops[1])+regs_of(ops[2])+[('m0',0)]; s.dma=True
            else: s.w=regs_of(ops[0]); s.r=regs_of(ops[1])+regs_of(ops[2])+regs_of(ops[3])
        elif op.startswith('buffer_store'):
            s.kind='vm'; s.store=regs_of(ops[0]); s.r=sum([regs_of(o) for o in ops],[])
        elif op.startswith('v_'):
            s.kind='valu'
            if op.startswith('v_permlane'): s.w=regs_of(ops[0])+regs_of(ops[1]); s.r=list(s.w)
            else:
                s.w=regs_of(ops[0]); s.r=sum([regs_of(o) for o in ops[1:]],[])
                if op.startswith(('v_fmac','v_dot2c')): s.r+=s.w
        elif op.startswith('s_'):
            s.kind='salu'
            if op in('s_waitcnt','s_barrier','s_nop','s_endpgm','s_setprio') or op.startswith(('s_cbranch','s_branch')): pass
            elif op.startswith('s_cmp'): s.r=sum([regs_of(o) for o in ops],[])
            else: s.w=regs_of(ops[0]); s.r=sum([regs_of(o) for o in ops[1:]],[])
        s.trans = op.replace('_e32','').replace('_e64','') in TRANS
    def states(s):
        if s.kind=='label': return 0
        if s.op=='s_nop': return int(s.text.split()[1])+1
        return 1
def finalize(seq, merge_dist=10, log=None):
    out=[]; ds=[]; vm=[]
    nn=0; nw=0
    def dist(idx): return sum(x.states() for x in out[idx+1:])
    lastw={}
    lastc={}
    lastst={}
    for ins in seq:
        if ins.kind=='label': out.append(ins); continue
        touched=set(ins.r)|set(ins.w)
        lg=None; vc=None
        for p,(q,idx) in enumerate(ds):
            if touched & set(q.w): lg=p
        for p,(q,idx) in enumerate(vm):
            if touched & set(q.w): vc=p
        if ins.need:
            for p,(q,idx) in enumerate(vm):
                if q.tag in ins.need: vc=p if vc is None else max(vc,p)
            for p,(q,idx) in enumerate(ds):
                if q.tag in ins.need: lg=p if lg is None else max(lg,p)
        if ins.kind=='ds' and len(ds)>=15 and lg is None: lg=0
        if lg is not None:
            while lg+1<len(ds) and len(out)-ds[lg+1][1]>=merge_dist: lg+=1
        w=[]
        if vc is not None:
            n=len(vm)-1-vc; assert n<=63,n
            w.append(f'vmcnt({n})'); vm=vm[vc+1:]
        if lg is not None:
            n=len(ds)-1-lg; assert n<=15
            w.append(f'lgkmcnt({n})'); ds=ds[lg+1:]
        if w: out.append(I('s_waitcnt '+' '.join(w))); nw+=1
        if ins.kind=='pseudo': continue
        if ins.op=='s_waitcnt':
            m=re.search(r'vmcnt\((\d+)\)',ins.text)
            if m: vm=vm[max(0,len(vm)-int(m.group(1))):]
            m=re.search(r'lgkmcnt\((\d+)\)',ins.text)
            if m: ds=ds[max(0,len(ds)-int(m.group(1))):]
        need=0
        def req(idx,n):
            nonlocal need
            if len(out)-idx<=n+1: need=max(need,n-dist(idx))
        for r in touched:
            if r in lastw:
                idx,p=lastw[r]
                if p.kind=='mfma':
                    big='32x32' in p.op
                    if ins.kind=='mfma':
                        if r in ins.ab: req(idx,12 if big else 8)
                        elif r in ins.c and ins.c!=p.w: req(idx,10 if big else 6)
                        elif r in ins.w and ins.w!=p.w: req(idx,10 if big else 6)
                    else: req(idx,12 if big else 8)
                elif p.kind=='valu' and r in ins.r:
                    if r[0] in 'va':
                        if ins.kind=='mfma' or ins.op.startswith('v_permlane'): req(idx,2)
                        if p.trans and ins.kind=='valu' and not ins.trans: req(idx,1)
                        if ins.op.startswith(('v_readfirstlane','v_readlane')): req(idx,1)
                    else:
                        if ins.kind=='vm': req(idx,5)
                        elif ins.kind=='valu': req(idx,2)
                        elif ins.kind=='salu': req(idx,2)
                elif p.kind=='salu' and r==('m0',0) and ins.kind=='vm': req(idx,1)
        for r in ins.w:
            if ins.kind!='mfma' and r in lastc: req(lastc[r],7 if '32x32' in out[lastc[r]].op else 3)
            if r in lastst: req(lastst[r],2)
        if need>0:
            out.append(I(f's_nop {need-1}')); nn+=need
            if log is not None: log.append((len(out),ins.text,need))
        idx=len(out); out.append(ins)
        if ins.kind=='ds': ds.append((ins,idx))
        elif ins.kind=='vm':
            vm.append((ins,idx)); assert len(vm)<=63, 'vm overflow'
            if hasattr(ins,'store'):
                for r in ins.store: lastst[r]=idx
        for r in ins.w:
            if ins.kind in('ds','vm'): lastw.pop(r,None)
            else: lastw[r]=(idx,ins)
        if ins.kind=='mfma':
            for r in ins.c: lastc[r]=idx
    return out,nn,nw
```

```python
from asmlib import I, finalize
def fallback(G):
    vr,MF,xred,VA=G['vr'],G['MF'],G['xred'],G['VA']
    out=[]
    def blk(L):
        L=[x if isinstance(x,I) else I(x) for x in L]
        o,_,_=finalize(L+[I('s_waitcnt vmcnt(0) lgkmcnt(0)'),I('s_nop 15')]); out.extend(x.text for x in o)
    def frags(dst,k,srd,so):
        return [f'buffer_load_dwordx4 {vr(dst+16*sub+4*ks,4,k)}, v{100+sub}, s[{srd}:{srd+3}], s{so} offen offset:{(ks//2)*128+(ks%2)*16}' for sub in range(2) for ks in range(4)]
    qk=[f'{MF} {vr(192+8*qs+4*kb,4)}, {vr(64+16*kb+4*ks,4)}, {vr(16*qs+4*ks,4,"a")}, {"0" if ks==0 else vr(192+8*qs+4*kb,4)}' for kb in range(2) for ks in range(4) for qs in range(2)]
    blk(['s_waitcnt vmcnt(0) lgkmcnt(0)','v_mbcnt_lo_u32_b32 v99, -1, 0','v_mbcnt_hi_u32_b32 v99, -1, v99',
         'v_and_b32 v100, 15, v99','v_lshlrev_b32 v100, 8, v100','v_lshrrev_b32 v101, 4, v99','v_lshl_add_u32 v100, v101, 5, v100',
         'v_lshlrev_b32 v103, 1, v101','v_and_b32 v102, 7, v99','v_xor_b32 v102, v102, v103','v_lshlrev_b32 v102, 4, v102','v_lshrrev_b32 v103, 3, v99','v_lshl_add_u32 v102, v103, 8, v102',
         'v_xor_b32 v103, 16, v102','v_add_u32 v101, 0x1000, v100','s_sub_u32 s43, s25, 65536']+[f'v_add_u32 v{104+d}, s43, v{VA+d}' for d in range(4)]+['s_lshl_b32 s42, s20, 13','s_mov_b32 s40, 0'])
    out.append('L_fb_t:')
    blk(frags(0,'a',4,42)+['v_mov_b32 v250, 0xff800000','v_mov_b32 v251, 0xff800000','s_mov_b32 s41, 0'])
    out.append('L_fb_p1:')
    mx=[]
    for qs in range(2):
        for k in range(0,8,2): mx.append(f'v_max3_f32 v{250+qs}, v{250+qs}, v{192+8*qs+k}, v{193+8*qs+k}')
    blk(frags(64,'v',8,41)+qk+mx+['s_add_u32 s41, s41, 8192'])
    out+=['s_cmp_lt_u32 s41, 131072','s_cbranch_scc1 L_fb_p1']
    L=[]
    for qs in range(2): L+=[z for z,_ in xred('v_max_f32',250+qs,248)]+[f'v_mul_f32 v{250+qs}, s22, v{250+qs}']
    blk(L+['v_mov_b32 v248, 0','v_mov_b32 v249, 0']+[f'v_mov_b32 v{k}, 0' for k in range(64)]+['s_mov_b32 s41, 0'])
    out.append('L_fb_p2:')
    L=frags(64,'v',8,41)
    for rg in range(4):
        L.append(f's_add_u32 s43, s41, {rg*2048}')
        for hf in range(2): L+=[f's_add_u32 m0, s25, {rg*1024+hf*3968}',I(f'buffer_load_dwordx4 v{102+rg%2}, s[12:15], s43 offen offset:{hf*128} lds',tag='V')]
    L+=qk
    L+=[I(f'ds_read_b64_tr_b16 {vr(96+4*dt+2*rr,2,"a")}, v{104+dt%4} offset:{(dt//4)*4096+rr*2048}',need=['V']) for dt in range(8) for rr in range(2)]
    for e in range(16): L.append(f'v_fma_f32 v{192+e}, v{192+e}, s22, -v{250+e//8}')
    for e in range(16): L.append(f'v_exp_f32 v{192+e}, v{192+e}')
    for e in range(16): L.append(f'v_add_f32 v{248+e//8}, v{248+e//8}, v{192+e}')
    for e in range(1,16,2): L.append(f'v_cvt_pk_bf16_f32 v{192+(e//8)*8+(e%8)//2}, v{191+e}, v{192+e}')
    L+=[f'{MF} {vr(32*qs+4*dt,4)}, {vr(96+4*dt,4,"a")}, {vr(192+8*qs,4)}, {vr(32*qs+4*dt,4)}' for qs in range(2) for dt in range(8)]
    blk(L+['s_add_u32 s41, s41, 8192'])
    out+=['s_cmp_lt_u32 s41, 131072','s_cbranch_scc1 L_fb_p2']
    A,B,C,D=G['epi_ops'](0,0,248,250,64,'v',42)
    blk(A+B+C+D+['s_add_u32 s42, s42, 32768','s_add_u32 s40, s40, 1'])
    out+=['s_cmp_lt_u32 s40, 4','s_cbranch_scc1 L_fb_t']
    return out
```

```python
import sys, struct, math
from asmlib import I, finalize
OPT=dict(stamps=0, b1=2, b2=2, nofb=0, merge=14, lead=4, ew=110, sw=8, s0=5, s1=6, kl=8, sp=10, dc=2, vl=8)
for a in sys.argv[2:]:
    k,v=a.split('='); OPT[k]=float(v) if '.' in v else int(v)
NAME='standalone__mha_softmax__near_ridge'
C=struct.unpack('<I',struct.pack('<f',(128**-0.5)*math.log2(math.e)))[0]
T0=131072
SB=[192,208]; KR=224; KA=236; VA=238; LREG=[242,244,246,248]; NM=[252,250,66,250]; CI=248
VO,WA=254,255; OW,ORD,OG=254,252,253
VF=96; ST=128; MF='v_mfma_f32_16x16x32_bf16'
def OREG(t): return 64*(t%3)
def QREG(t): return 32*(t%3)
def vr(b,n,k='v'): return f'{k}[{b}:{b+n-1}]'
nst=[0]
def stamp():
    if not OPT['stamps']: return []
    k=nst[0]; nst[0]+=1
    return [I(f's_mem{"real" if OPT["stamps"]==1 else ""}time s[{64+2*k}:{65+2*k}]')]
P=[]
def a(t,**k): P.append(I(t,**k))
a('s_cmp_ge_u32 s2, 256'); a('s_cbranch_scc1 L_end')
a('s_load_dwordx4 s[28:31], s[0:1], 0'); a('s_load_dwordx4 s[32:35], s[0:1], 16')
P+=stamp()
a('v_lshrrev_b32 v1, 6, v0'); a('v_and_b32 v0, 63, v0')
a('v_readfirstlane_b32 s20, v1')
a('v_lshrrev_b32 v2, 3, v0'); a('v_lshl_add_u32 v2, v1, 3, v2'); a('v_lshlrev_b32 v2, 8, v2')
a('v_lshrrev_b32 v3, 4, v0'); a('v_and_b32 v4, 1, v1'); a('v_lshl_add_u32 v4, v3, 1, v4')
a('v_and_b32 v5, 7, v0'); a('v_xor_b32 v4, v4, v5'); a(f'v_lshl_add_u32 v{VO}, v4, 4, v2')
a(f'v_xor_b32 v6, 16, v{VO}')
a('s_mul_i32 s36, s2, 126976'); a('s_lshl_b32 s37, s2, 17')
a('s_lshl_b32 s21, s20, 10'); a('s_and_b32 s26, s20, 1'); a('s_lshl_b32 s26, s26, 10')
a('s_mul_i32 s27, s20, 6144'); a('s_mul_i32 s38, s20, 24576')
a('s_lshl_b32 s25, s20, 13'); a(f's_add_u32 s25, s25, {T0}')
a(f's_mov_b32 s22, {C}'); a('s_mov_b32 s24, 0')
a('s_waitcnt lgkmcnt(0)')
for d,src,off,sz in ((4,28,36,126976),(8,30,37,131072),(12,32,37,131072),(16,34,36,126976)):
    a(f's_add_u32 s{d}, s{src}, s{off}'); a(f's_addc_u32 s{d+1}, s{src+1}, 0'); a(f's_mov_b32 s{d+2}, {sz}'); a(f's_mov_b32 s{d+3}, 0x20000')
def q_dma(t,sbase,extra,odd):
    L=[]
    for idx in (0,2,1,3):
        g=[I(f's_xor_b32 s39, s26, {idx*1024}'), I('s_lshl_b32 s23, s39, 1'), I(f's_add_u32 s23, s23, s27'), I(f's_add_u32 s23, s23, {t*32768}'), I(f's_add_u32 s39, s39, s{sbase}')]
        if idx==1 and odd==VO: g.append(I(f'v_xor_b32 v{VO}, 16, v{VO}'))
        L.append(g)
        for hf in range(2):
            L.append([I(f's_add_u32 m0, s39, {extra+hf*3968}'), I(f'buffer_load_dwordx4 v{VO if idx%2==0 else odd}, s[4:7], s23 offen offset:{hf*128} nt lds',tag=f'Q{t}')])
    return L
def tile_ld(j,k):
    part,hf=divmod(k,2); L=[I(f's_mov_b32 s23, {j*8192}')] if k==0 else []
    if j<8: return L+[I(f'buffer_load_dwordx4 {vr(ST+16*j+4*k,4,"a")}, v{VO}, s[{8+4*part}:{11+4*part}], s23 offen offset:{hf*128} nt')]
    L=[I(f's_add_u32 m0, s21, {(j%8)*16384+part*8192+hf*3968}')]+L
    return L+[I(f'buffer_load_dwordx4 v{VO}, s[{8+4*part}:{11+4*part}], s23 offen offset:{hf*128} nt lds',tag=f'T{j}')]
for g in q_dma(0,38,0,6): P+=g
for k in range(4): P+=tile_ld(0,k)
for g in q_dma(1,38,8192,6): P+=g
P+=stamp()
a('v_and_b32 v2, 15, v0'); a('v_lshrrev_b32 v3, 4, v0')
a('v_bfe_u32 v4, v2, 1, 2'); a('v_xor_b32 v4, v4, v3'); a('v_lshlrev_b32 v4, 1, v4'); a('v_lshrrev_b32 v5, 3, v2'); a('v_or_b32 v4, v4, v5')
a('v_lshlrev_b32 v4, 4, v4'); a('v_lshl_add_u32 v4, v2, 7, v4')
for kk in range(2):
    a(f'v_xor_b32 v{190+kk}, {16*kk}, v4'); a(f'v_add_u32 v{KA+kk}, {T0}, v{190+kk}'); a(f'v_add_u32 v{190+kk}, s38, v{190+kk}')
a('v_lshrrev_b32 v4, 2, v0'); a('v_lshlrev_b32 v5, 7, v4')
a('v_bfe_u32 v4, v0, 3, 2'); a('v_lshl_add_u32 v5, v4, 5, v5')
a('v_lshrrev_b32 v4, 4, v0'); a('v_xor_b32 v4, v4, v0'); a('v_and_b32 v4, 2, v4'); a('v_lshl_add_u32 v5, v4, 3, v5')
a('v_and_b32 v4, 1, v0'); a('v_lshl_add_u32 v5, v4, 3, v5'); a(f'v_add_u32 v5, {T0}, v5')
for dd in range(4): a(f'v_xor_b32 v{VA+dd}, {32*dd}, v5')
a(f'v_lshlrev_b32 v4, 4, v0'); a(f'v_add_u32 v4, s21, v4'); a(f'v_add_u32 v{WA}, {T0}, v4')
def q_rd(t,n,areg,off,first=False):
    qs,ks=divmod(n,4)
    dst=vr(QREG(t)+4*n,4,"a") if t==3 else vr(128+4*n,4)
    return I(f'ds_read_b128 {dst}, v{areg} offset:{off+(ks//2)*4096+qs*2048}', need=[f'Q{t}'] if first else None)
def q_scale(t,n):
    L=[]
    for k in range(4): L+=[I(f'v_lshlrev_b32 v{160+2*k}, 16, v{128+4*n+k}'),I(f'v_and_b32 v{161+2*k}, 0xffff0000, v{128+4*n+k}')]
    for k in range(8): L.append(I(f'v_mul_f32 v{160+k}, s22, v{160+k}'))
    for k in range(4): L.append(I(f'v_cvt_pk_bf16_f32 v{128+4*n+k}, v{160+2*k}, v{161+2*k}'))
    for k in range(4): L.append(I(f'v_accvgpr_write_b32 a{QREG(t)+4*n+k}, v{128+4*n+k}'))
    return L
QORD=(0,4,1,5,2,6,3,7)
def st_wr(j,k,base,tag): return I(f'ds_write_b128 v{WA}, {vr(ST+16*j+4*k,4,"a")} offset:{base+k*4096}',tag=tag)
for n in QORD: P.append(q_rd(0,n,190+n%2,0,n==0))
P+=stamp()
q2=q_dma(2,38,16384,6)
for i,n in enumerate(QORD):
    P+=q_scale(0,n)
    if i%2==1:
        for g in q2[3*(i//2):3*(i//2)+3]: P+=g
for k in range(4): P.append(st_wr(0,k,0,'W0'))
for k in range(4): P+=tile_ld(1,k)
a('s_barrier',need=['W0'])
P+=stamp()
units=[(j,t) for j in range(16) for t in range(3)]+[((8+i)%16,3) for i in range(16)]
NU=len(units); M=[]; qk={}; pv={}
def slot_addr(j,t): return T0+(j%2)*16384 if (t<3 and j<8) else (j%8)*16384
def isfirst(j,t): return (j==0 and t<3) or (j==8 and t==3)
qh={}; ph={}
def emit_qk(u,kb):
    j,t=units[u]; qh[u,kb]=len(M); s=SB[u%2]
    for ks in range(4):
        for qs in range(2):
            d=vr(s+8*qs+4*kb,4)
            M.append(I(f'{MF} {d}, {vr(KR+4*((8*u+4*kb+ks)%3),4)}, {vr(QREG(t)+16*qs+4*ks,4,"a")}, {("0" if (u==0 or t==3) else vr(CI,4)) if ks==0 else d}'))
def emit_pv(u,qs):
    j,t=units[u]; ph[u,qs]=len(M); s=SB[u%2]
    for dt in range(8):
        o=vr(OREG(t)+32*qs+4*dt,4)
        M.append(I(f'{MF} {o}, {vr(VF+4*dt,4,"a")}, {vr(s+8*qs,4)}, {"0" if isfirst(j,t) else o}'))
emit_qk(0,0); emit_qk(0,1)
for u in range(NU-1): emit_qk(u+1,0); emit_pv(u,0); emit_qk(u+1,1); emit_pv(u,1)
emit_pv(NU-1,0); emit_pv(NU-1,1)
NG=len(M); streams={}
def put(st,ins,e,d,cost=1):
    if not isinstance(ins,list): ins=[ins]
    streams.setdefault(st,[]).append([ins,e,d,cost])
def U(j,t): return units.index((j,t))
B={j:qh[U(j,2),1]+7 for j in range(16)}
Cb={1:qh[U(13,3),0], 2:qh[U(15,3),1]+7, 3:qh[U(1,3),0], 4:qh[U(3,3),1]+7}
def avail(j,t):
    if t<3: return -1 if j==0 else B[j-1]+1
    if j>=8: return -1
    return Cb[2]+1 if j<4 else Cb[4]+1
def xred(op,x,tmp):
    return [(f'v_mov_b32 v{tmp}, v{x}',1),(f'v_permlane32_swap_b32 v{tmp}, v{x}',3),(f'{op} v{x}, v{x}, v{tmp}',1),
            (f'v_mov_b32 v{tmp}, v{x}',1),(f'v_permlane16_swap_b32 v{tmp}, v{x}',3),(f'{op} v{x}, v{x}, v{tmp}',1)]
for u,(j,t) in enumerate(units):
    s=SB[u%2]; ops=[]
    if u==0:
        o=[f'v_max3_f32 v{CI}, v{s}, v{s+1}, v{s+2}']+[f'v_max3_f32 v{CI}, v{CI}, v{s+k}, v{s+k+1}' for k in range(3,15,2)]+[f'v_max_f32 v{CI}, v{CI}, v{s+15}']
        o+=[z for z,_ in xred('v_max_f32',CI,CI+1)]+[f'v_sub_f32 v{CI+k}, 0, v{CI}' for k in (3,2,1,0)]+[f'v_mov_b32 v{242+k}, 0' for k in range(6)]
        for z in o: put('sm',I(z),15,15)
    if (j,t)==(8,3):
        two=[]
        for qs in range(2):
            l=LREG[t]+qs; nm=NM[t]+qs; b=s+8*qs
            o=[(f'v_max3_f32 v{nm}, v{b}, v{b+1}, v{b+2}',1),(f'v_max3_f32 v{nm}, v{nm}, v{b+3}, v{b+4}',1),(f'v_max3_f32 v{nm}, v{nm}, v{b+5}, v{b+6}',1),(f'v_max_f32 v{nm}, v{nm}, v{b+7}',1)]
            two.append(o+xred('v_max_f32',nm,l)+[(f'v_mul_f32 v{nm}, s22, v{nm}',1),(f'v_mov_b32 v{l}, 0',1)])
        for x,y in zip(*two): ops+=[x,y]
    EO=(0,1,2,3,8,9,10,11,4,5,6,7,12,13,14,15); half=None
    if (j,t)==(8,3) or u in(0,NU-1): EO=tuple(range(16))
    for k in range(-2,17):
        if 0<=k+2<16 and u==0: ops.append((f'v_add_f32 v{s+EO[k+2]}, v{s+EO[k+2]}, v{CI}',1))
        if 0<=k+2<16 and t==3: ops.append((f'v_fma_f32 v{s+EO[k+2]}, v{s+EO[k+2]}, s22, -v{NM[t]+EO[k+2]//8}',1))
        if 0<=k+1<16: ops.append((f'v_exp_f32 v{s+EO[k+1]}, v{s+EO[k+1]}',2))
        if 0<=k-1<16:
            e=EO[k-1]; l=LREG[t]+e//8
            ops.append((f'v_add_f32 v{l}, v{l}, v{s+e}',1))
            if e%2==1:
                ops.append((f'v_cvt_pk_bf16_f32 v{s+(e//8)*8+(e%8)//2}, v{s+e-1}, v{s+e}',1))
                if e==7: half=len(ops)
    e0=qh[u,0]+7+OPT['s0']; d1=e0+32
    if (j,t)==(8,3): e0=qh[u,1]+11
    if u==0: e0=d1=15
    d1=min(d1,ph[u,1]-2)
    tot=sum(c for _,c in ops); acc=0; early=True
    for n,(tx,c) in enumerate(ops):
        d=int(e0+(d1-e0)*(acc+c/2)/tot+0.5); acc+=c
        x=I(tx)
        if early and any(s<=r[1]<s+16 and (r[1]-s)%8>=4 for r in x.r if r[0]=='v'): early=False
        ee=qh[u,0 if early else 1]+11 if u else 15
        d=max(d,ee)
        if n<half: d=min(d,ph[u,0]-2)
        put('sm',x,min(max(ee,d-OPT['sw']),d),d,c)
kwin=T0
for u,(j,t) in enumerate(units):
    base=slot_addr(j,t); w=base&~0xffff
    for f in range(8):
        kb,ks=divmod(f,4)
        if ks<3:
            prev=(u,0) if kb else (u-1,1)
            e=-1 if (u,kb)==(0,0) else max(qh[prev]+2*(ks+1)+1,avail(j,t)); d=max(e,qh[u,kb]+2*ks-OPT['kl'])
        else: e=qh[u,kb]+1; d=e
        if w!=kwin and f<2: put('k',I(f'v_add_u32 v{KA+f}, {(w-kwin)&0xffffffff}, v{KA+f}'),min(e,qh[u-1,1]+2),max(e,d-1))
        put('k',I(f'ds_read_b128 {vr(KR+4*((8*u+f)%3),4)}, v{KA+ks%2} offset:{base-w+(ks//2)*4096+kb*2048}'),e,d)
    kwin=w
vwin=T0
for u,(j,t) in enumerate(units):
    if t in(1,2): continue
    base=slot_addr(j,t)+8192; w=base&~0xffff
    if w!=vwin:
        for dd in range(4): put('v',I(f'v_add_u32 v{VA+dd}, {(w-vwin)&0xffffffff}, v{VA+dd}'),ph[u-1,0]+8,ph[u-1,1]-1)
    for dt in range(8):
        for rr in range(2):
            e=-1 if u==0 else max(ph[u-1,1]+dt,avail(j,t))
            n=2*dt+rr; lo=(ph[u-1,1]+1) if u else 0; hi=ph[u,0]+7-OPT['vl']
            d=max(e,min(ph[u,0]+dt-OPT['vl'], int(lo+(hi-lo)*n/15)))
            put('v',I(f'ds_read_b64_tr_b16 {vr(VF+4*dt+2*rr,2,"a")}, v{VA+dt%4} offset:{base-w+(dt//4)*4096+rr*2048}'),e,d)
    vwin=w
for t in (1,2):
    g=qh[t,0]-1
    for n,x in enumerate(QORD): put('t',q_rd(t,x,190+x%2,t*8192,n==0),g,g)
    for n,x in enumerate(QORD): put('t',q_scale(t,x),g+2*(n//2) if n>1 else g,g+2*(n//2) if n>1 else g,20)
LD=OPT['lead']
for j in range(16):
    g0=B[j-1]+1 if j>0 else 0
    tl=list(range(2,LD+1)) if j==0 else ([j+LD] if j+LD<16 else [])
    n=0
    for jj in tl:
        for k in range(4):
            sp=4 if j==0 else OPT['sp']
            gl=tile_ld(jj,k)
            for x in gl[:-1]: put('y',x,g0+sp*n,g0+2+sp*n)
            put('y',gl[-1],g0+3+sp*n,g0+sp*n+sp-1,OPT['dc']); n+=1
    if j==16-LD:
        for k,x in enumerate(sum(q_dma(3,25,0,VO),[])): put('y',x,g0+1+2*k,g0+2+2*k,OPT['dc'] if x.kind=='vm' else 1)
    if j+1<8:
        for k in range(4): put('x',st_wr(j+1,k,((j+1)%2)*16384,f'W{j+1}'),B[j]-30+6*k,B[j]-26+6*k,5)
    if j<15: put('x',[I('s_barrier',need=[f'W{j+1}',f'T{j+1}'])]+(stamp() if j in(0,3,7,11) else []),B[j],B[j])
g0=qh[U(15,0),1]+8
put('q',I(f's_sub_u32 s39, s25, 65536'),g0,g0+1)
for kk in range(2):
    put('q',I(f'v_add_u32 v{VO}, s39, v{KA+kk}'),g0+1+12*kk,g0+2+12*kk)
    for n,x in enumerate(range(kk,8,2)): put('q',q_rd(3,x,VO,0,True),g0+2+12*kk+2*n,g0+4+12*kk+2*n,1)
g1=ph[U(15,0),1]-1
def lane(r): return [f'v_mbcnt_lo_u32_b32 v{r}, -1, 0',f'v_mbcnt_hi_u32_b32 v{r}, -1, v{r}']
EAD=lane(OG)+[f'v_lshrrev_b32 v{OW}, 3, v{OG}',f'v_xor_b32 v{OW}, v{OW}, v{OG}',f'v_and_b32 v{OW}, 4, v{OW}',f'v_lshlrev_b32 v{OW}, 2, v{OW}',
    f'v_and_b32 v{ORD}, 15, v{OG}',f'v_lshl_add_u32 v{OW}, v{ORD}, 5, v{OW}',f'v_bfe_u32 v{ORD}, v{OG}, 4, 1',f'v_lshl_add_u32 v{OW}, v{ORD}, 3, v{OW}',f'v_add_u32 v{OW}, s25, v{OW}',
    f'v_bfe_u32 v{ORD}, v{OG}, 1, 3',f'v_lshlrev_b32 v{ORD}, 10, v{ORD}',f'v_add_u32 v{ORD}, s25, v{ORD}',
    f'v_lshlrev_b32 v{OG}, 4, v{OG}',f'v_and_or_b32 v{ORD}, v{OG}, 16, v{ORD}',
    f'v_lshrrev_b32 v{OG}, 3, v{OG}',f'v_and_b32 v{OG}, 0x60, v{OG}',f'v_add_u32 v{ORD}, v{ORD}, v{OG}']+lane(OG)+[f'v_lshlrev_b32 v{OG}, 4, v{OG}','s_lshl_b32 s27, s20, 13']
def epi_ops(t,o,l,tmp,sreg,sk='a',soff=None):
    two=[]
    for qs in range(2):
        x=l+qs; y=tmp+qs
        two.append([I(z) for z,_ in xred('v_add_f32',x,y)]+[I(f'v_med3_f32 v{y}, v{x}, s60, 1.0' if 0 else f'v_min_f32 v{y}, s60, v{x}'),I(f'v_max_f32 v{y}, s61, v{y}'),I(f'v_cmp_neq_f32 s[{56+2*qs}:{57+2*qs}], v{y}, v{x}'),I(f'v_rcp_f32 v{x}, v{x}'),I(f's_or_b32 s24, s24, s{56+2*qs}'),I(f's_or_b32 s24, s24, s{57+2*qs}')])
    A=[I('s_mov_b32 s60, 0x4e800000'),I('s_mov_b32 s61, 0x2b800000')]
    for x,y in zip(*two): A+=[x,y]
    Bq=[]
    for qs in range(2):
        for dt in range(8):
            b=o+32*qs+4*dt
            for k in range(4): Bq.append(I(f'v_mul_f32 v{b+k}, v{b+k}, v{l+qs}'))
            for k in range(2): Bq.append(I(f'v_cvt_pk_bf16_f32 v{b+k}, v{b+2*k}, v{b+2*k+1}'))
            Bq.append(I(f'ds_write_b64 v{OW}, {vr(b,2)} offset:{dt*1024+qs*512}'))
    Cq=[]
    for par in range(2):
        for n in range(par,8,2): Cq.append(I(f'ds_read_b128 {vr(sreg+4*n,4,sk)}, v{ORD} offset:{n*128}'))
        Cq.append(I(f'v_xor_b32 v{ORD}, 16, v{ORD}'))
    D=[I(f's_add_u32 s23, s27, {t*32768}') if soff is None else I(f's_mov_b32 s23, s{soff}'),I('s_add_u32 s39, s23, 4096')]
    for n in (0,2,4,6,1,3,5,7): D.append(I(f'buffer_store_dwordx4 {vr(sreg+4*n,4,sk)}, v{OG}, s[16:19], s{23 if n<4 else 39} offen offset:{(n%4)*1024} nt'))
    return A,Bq,Cq,D
p83=ph[U(8,3),0]; ew=OPT['ew']
EW={0:(g1+28,p83-4), 1:(p83+12,p83+12+ew), 2:(p83+40+ew,p83+40+2*ew)}
for t in range(3):
    A,Bq,Cq,D=epi_ops(t,OREG(t),LREG[t],NM[t],32)
    e,d=EW[t]
    if t<2:
        ea=ph[U(15,t),1]-1
        for k,x in enumerate(A): put('a',x,ea,ea+1+k//2)
        if t==0:
            for k,x in enumerate(EAD): put('a',I(x),ea+12,ea+14+k//2)
    else:
        for k,x in enumerate(A): put('e',x,e-18,e-14+k//2)
    for k,x in enumerate(Bq): put('e',x,e,int(e+(d-e)*(k+1)/len(Bq)),3 if x.kind=='ds' else 1)
    for k,x in enumerate(Cq): put('e',x,d,d+1+k)
    for k,x in enumerate(D): put('f',x,d+16+2*k,d+17+2*k,3 if x.kind=='vm' else 1)
put('x',I(f'v_add_u32 v{WA}, {(-T0)&0xffffffff}, v{WA}'),Cb[1]-4,Cb[1]-1)
put('x',[I('s_barrier')]+stamp(),Cb[1],Cb[1])
for n in range(16): put('x',st_wr(n//4,n%4,(n//4)*16384,'X0'),Cb[1]+1+4*n,Cb[1]+3+4*n,5)
put('x',I('s_barrier',need=['X0']),Cb[2],Cb[2])
put('x',I(f'v_add_u32 v{WA}, 0x10000, v{WA}'),Cb[3]-4,Cb[3]-1)
put('x',I('s_barrier'),Cb[3],Cb[3])
for n in range(16): put('x',st_wr(4+n//4,n%4,(n//4)*16384,'X1'),Cb[3]+1+4*n,Cb[3]+3+4*n,5)
put('x',[I('s_barrier',need=['X1'])]+stamp(),Cb[4],Cb[4])
for st,L in streams.items():
    for k in range(len(L)-2,-1,-1): L[k][2]=min(L[k][2],L[k+1][2]); L[k][1]=min(L[k][1],L[k][2]) if st in('sm',) else L[k][1]
    for k in range(len(L)): assert L[k][1]<=L[k][2], (st,k,L[k][0][0].text,L[k][1],L[k][2])
body=[]; pos={s:0 for s in streams}; carry=0.0; hist=[]
p2=ph[U(15,0),1]
for g in range(-1,NG):
    if g>=0: body.append(M[g])
    used=0; mn=OPT['b1'] if g<p2 else OPT['b2']; pk=[]; vw=set(); free=1
    def cost(it): return 0 if (free and len(it[0])==1 and it[0][0].kind=='salu') else it[3]
    while True:
        c=sorted((streams[s][pos[s]][2],s) for s in streams if pos[s]<len(streams[s]) and streams[s][pos[s]][1]<=g)
        if not c: break
        if c[0][0]>g:
            c=[x for x in c if not(streams[x[1]][pos[x[1]]][0][0].kind in('ds','vm') and vw&set(streams[x[1]][pos[x[1]]][0][0].r))]
            fit=[x for x in c if used+cost(streams[x[1]][pos[x[1]]])<=mn]
            if fit: c=fit
            elif used>=mn or not c: break
        d,s=c[0]; it=streams[s][pos[s]]; x=it[0][0]
        k={'salu':0,'ds':1,'vm':1}.get(x.kind,2)
        if (vw&set(x.r)) or g<100: k=2
        if x.op=='s_barrier': k=1.5
        used+=cost(it)
        if x.kind=='salu': free=0
        for y in it[0]:
            if y.kind=='valu' or k==2: vw|=set(y.w)
        pk.append((k,len(pk),it[0])); pos[s]+=1
    pk.sort(key=lambda z:z[:2])
    pre=I('s_nop 0'); pre.kind='pseudo'; pre.need=[]
    if g+1<NG: pre.r=list(M[g+1].r)
    for k,_,L in pk:
        for y in L:
            pre.r+=y.r; pre.need+=(y.need or [])
    if g>=100: body.append(pre)
    for k,_,L in pk: body+=L
    hist.append(used)
print('underfilled',sum(1 for h in hist[100:] if h<2),'excess',sum(h-2 for h in hist[100:p2] if h>2),sum(h-2 for h in hist[p2:] if h>2))
assert all(pos[s]==len(streams[s]) for s in streams)
A,Bq,Cq,D=epi_ops(3,0,LREG[3],NM[3],64,'v')
log=[]
main,nn,nw=finalize(P+body+stamp()+A+Bq+Cq+D+stamp(),OPT['merge'],log)
print('instrs',len(main),'nop states',nn,'waits',nw,'gap cost p1 avg %.2f max %d; p2 avg %.2f max %d'%(sum(hist[18:p2])/(p2-18),max(hist[90:p2]),sum(hist[p2:])/(NG-p2),max(hist[p2:])))
if OPT.get('v'): print(log)
out=[x.text for x in main]
if OPT['stamps']:
    out+=['s_waitcnt vmcnt(0)']+[x.text for x in stamp()]
    out+=['s_load_dwordx2 s[28:29], s[0:1], 40','s_lshl_b32 s30, s2, 2','s_add_u32 s30, s30, s20',f's_mul_i32 s30, s30, {nst[0]*8}','s_waitcnt lgkmcnt(0)',
          's_add_u32 s28, s28, s30','s_addc_u32 s29, s29, 0','v_mov_b32 v2, 0']
    for k in range(nst[0]): out+=[f'v_mov_b32 v4, s{64+2*k}',f'v_mov_b32 v5, s{65+2*k}',f'global_store_dwordx2 v2, v[4:5], s[28:29] offset:{8*k}','s_nop 1']
    print('stamps',nst[0])
from fallback import fallback
if not OPT['nofb']: out+=['s_cmp_eq_u32 s24, 0','s_cbranch_scc1 L_end']+fallback(globals())
ref=open('cdna_kernels/'+NAME+'.s.ref').read()
txt=ref.split('; @launch')[0]+'; @launch grid=(256,1,1) block=(256,1,1) lds=163840\n.amdgcn_target "amdgcn-amd-amdhsa--gfx950"\n.text\n.globl '+NAME+'_kernel\n.p2align 8\n.type '+NAME+'_kernel,@function\n'+NAME+'_kernel:\n'
txt+='\n'.join(('' if x.endswith(':') else '    ')+x for x in out)+'\nL_end:\n    s_endpgm'
open(sys.argv[1],'w').write(txt+ref.split('s_endpgm')[1].replace('next_free_vgpr 256','next_free_vgpr 512'))
```

```python
import sys, struct, math
from asmlib import I, finalize
OPT=dict(stamps=0, b1=2, b2=2, nofb=0, merge=14, lead=4, ew=110, sw=8, s0=5, s1=6, kl=8, sp=10, dc=2, vl=8)
for a in sys.argv[2:]:
    k,v=a.split('='); OPT[k]=float(v) if '.' in v else int(v)
NAME='standalone__mha_softmax__near_ridge'
C=struct.unpack('<I',struct.pack('<f',(128**-0.5)*math.log2(math.e)))[0]
T0=131072
SB=[192,208]; KR=224; KA=236; VA=238; LREG=[242,244,246,248]; NM=[252,250,66,250]; CI=248
VO,WA=254,255; OW,ORD,OG=254,252,253
VF=96; ST=128; MF='v_mfma_f32_16x16x32_bf16'
def OREG(t): return 64*(t%3)
def QREG(t): return 32*(t%3)
def vr(b,n,k='v'): return f'{k}[{b}:{b+n-1}]'
nst=[0]
def stamp():
    if not OPT['stamps']: return []
    k=nst[0]; nst[0]+=1
    return [I(f's_mem{"real" if OPT["stamps"]==1 else ""}time s[{64+2*k}:{65+2*k}]')]
P=[]
def a(t,**k): P.append(I(t,**k))
a('s_cmp_ge_u32 s2, 256'); a('s_cbranch_scc1 L_end')
a('s_load_dwordx4 s[28:31], s[0:1], 0'); a('s_load_dwordx4 s[32:35], s[0:1], 16')
P+=stamp()
a('v_lshrrev_b32 v1, 6, v0'); a('v_and_b32 v0, 63, v0')
a('v_readfirstlane_b32 s20, v1')
def warm(lab,n,ra,rd,lane):
    L=[[I(f'v_mbcnt_lo_u32_b32 v{ra}, -1, 0')],[I(f'v_mbcnt_hi_u32_b32 v{ra}, -1, v{ra}')],[I(f'v_lshlrev_b32 v{ra}, 7, v{ra}')]] if lane else [[I(f'v_lshlrev_b32 v{ra}, 7, v0')]]
    L.append([I('s_getpc_b64 s[44:45]'),I(lab+':')])
    for k in range(n):
        x=I(f'global_load_dword v{rd}, v{ra}, s[44:45]'); x.kind='vm'; x.r=[('v',ra),('s',44),('s',45)]; x.tag='WARM'
        L+=[[I(f'v_min_u32 v{ra}, L_end-{lab}, v{ra}')],[x],[I(f'v_add_u32 v{ra}, 0x2000, v{ra}')]]
    return L[:-1]
if OPT.get('warm'):
    for g in warm('L_w',OPT['warm'],252,253,False): P+=g
a('v_lshrrev_b32 v2, 3, v0'); a('v_lshl_add_u32 v2, v1, 3, v2'); a('v_lshlrev_b32 v2, 8, v2')
a('v_lshrrev_b32 v3, 4, v0'); a('v_and_b32 v4, 1, v1'); a('v_lshl_add_u32 v4, v3, 1, v4')
a('v_and_b32 v5, 7, v0'); a('v_xor_b32 v4, v4, v5'); a(f'v_lshl_add_u32 v{VO}, v4, 4, v2')
a(f'v_xor_b32 v6, 16, v{VO}')
a('s_mul_i32 s36, s2, 126976'); a('s_lshl_b32 s37, s2, 17')
a('s_lshl_b32 s21, s20, 10'); a('s_and_b32 s26, s20, 1'); a('s_lshl_b32 s26, s26, 10')
a('s_mul_i32 s27, s20, 6144'); a('s_mul_i32 s38, s20, 24576')
a('s_lshl_b32 s25, s20, 13'); a(f's_add_u32 s25, s25, {T0}')
a(f's_mov_b32 s22, {C}'); a('s_mov_b32 s24, 0')
a('s_waitcnt lgkmcnt(0)')
for d,src,off,sz in ((4,28,36,126976),(8,30,37,131072),(12,32,37,131072),(16,34,36,126976)):
    a(f's_add_u32 s{d}, s{src}, s{off}'); a(f's_addc_u32 s{d+1}, s{src+1}, 0'); a(f's_mov_b32 s{d+2}, {sz}'); a(f's_mov_b32 s{d+3}, 0x20000')
def q_dma(t,sbase,extra,odd):
    L=[]
    for idx in (0,2,1,3):
        g=[I(f's_xor_b32 s39, s26, {idx*1024}'), I('s_lshl_b32 s23, s39, 1'), I(f's_add_u32 s23, s23, s27'), I(f's_add_u32 s23, s23, {t*32768}'), I(f's_add_u32 s39, s39, s{sbase}')]
        if idx==1 and odd==VO: g.append(I(f'v_xor_b32 v{VO}, 16, v{VO}'))
        L.append(g)
        for hf in range(2):
            L.append([I(f's_add_u32 m0, s39, {extra+hf*3968}'), I(f'buffer_load_dwordx4 v{VO if idx%2==0 else odd}, s[4:7], s23 offen offset:{hf*128} nt lds',tag=f'Q{t}')])
    return L
def tile_ld(j,k):
    part,hf=divmod(k,2); L=[I(f's_mov_b32 s23, {j*8192}')] if k==0 else []
    if j<8: return L+[I(f'buffer_load_dwordx4 {vr(ST+16*j+4*k,4,"a")}, v{VO}, s[{8+4*part}:{11+4*part}], s23 offen offset:{hf*128} nt')]
    L=[I(f's_add_u32 m0, s21, {(j%8)*16384+part*8192+hf*3968}')]+L
    return L+[I(f'buffer_load_dwordx4 v{VO}, s[{8+4*part}:{11+4*part}], s23 offen offset:{hf*128} nt lds',tag=f'T{j}')]
for g in q_dma(0,38,0,6): P+=g
for k in range(4): P+=tile_ld(0,k)
for g in q_dma(1,38,8192,6): P+=g
P+=stamp()
a('v_and_b32 v2, 15, v0'); a('v_lshrrev_b32 v3, 4, v0')
a('v_bfe_u32 v4, v2, 1, 2'); a('v_xor_b32 v4, v4, v3'); a('v_lshlrev_b32 v4, 1, v4'); a('v_lshrrev_b32 v5, 3, v2'); a('v_or_b32 v4, v4, v5')
a('v_lshlrev_b32 v4, 4, v4'); a('v_lshl_add_u32 v4, v2, 7, v4')
for kk in range(2):
    a(f'v_xor_b32 v{190+kk}, {16*kk}, v4'); a(f'v_add_u32 v{KA+kk}, {T0}, v{190+kk}'); a(f'v_add_u32 v{190+kk}, s38, v{190+kk}')
a('v_lshrrev_b32 v4, 2, v0'); a('v_lshlrev_b32 v5, 7, v4')
a('v_bfe_u32 v4, v0, 3, 2'); a('v_lshl_add_u32 v5, v4, 5, v5')
a('v_lshrrev_b32 v4, 4, v0'); a('v_xor_b32 v4, v4, v0'); a('v_and_b32 v4, 2, v4'); a('v_lshl_add_u32 v5, v4, 3, v5')
a('v_and_b32 v4, 1, v0'); a('v_lshl_add_u32 v5, v4, 3, v5'); a(f'v_add_u32 v5, {T0}, v5')
for dd in range(4): a(f'v_xor_b32 v{VA+dd}, {32*dd}, v5')
a(f'v_lshlrev_b32 v4, 4, v0'); a(f'v_add_u32 v4, s21, v4'); a(f'v_add_u32 v{WA}, {T0}, v4')
def q_rd(t,n,areg,off,first=False):
    qs,ks=divmod(n,4)
    dst=vr(QREG(t)+4*n,4,"a") if t==3 else vr(128+4*n,4)
    return I(f'ds_read_b128 {dst}, v{areg} offset:{off+(ks//2)*4096+qs*2048}', need=[f'Q{t}'] if first else None)
def q_scale(t,n):
    L=[]
    for k in range(4): L+=[I(f'v_lshlrev_b32 v{160+2*k}, 16, v{128+4*n+k}'),I(f'v_and_b32 v{161+2*k}, 0xffff0000, v{128+4*n+k}')]
    for k in range(8): L.append(I(f'v_mul_f32 v{160+k}, s22, v{160+k}'))
    for k in range(4): L.append(I(f'v_cvt_pk_bf16_f32 v{128+4*n+k}, v{160+2*k}, v{161+2*k}'))
    for k in range(4): L.append(I(f'v_accvgpr_write_b32 a{QREG(t)+4*n+k}, v{128+4*n+k}'))
    return L
QORD=(0,4,1,5,2,6,3,7)
def st_wr(j,k,base,tag): return I(f'ds_write_b128 v{WA}, {vr(ST+16*j+4*k,4,"a")} offset:{base+k*4096}',tag=tag)
for n in QORD: P.append(q_rd(0,n,190+n%2,0,n==0))
P+=stamp()
q2=q_dma(2,38,16384,6)
for i,n in enumerate(QORD):
    P+=q_scale(0,n)
    if i%2==1:
        for g in q2[3*(i//2):3*(i//2)+3]: P+=g
for k in range(4): P.append(st_wr(0,k,0,'W0'))
for k in range(4): P+=tile_ld(1,k)
a('s_barrier',need=['W0'])
P+=stamp()
units=[(j,t) for j in range(16) for t in range(3)]+[((8+i)%16,3) for i in range(16)]
NU=len(units); M=[]; qk={}; pv={}
def slot_addr(j,t): return T0+(j%2)*16384 if (t<3 and j<8) else (j%8)*16384
def isfirst(j,t): return (j==0 and t<3) or (j==8 and t==3)
qh={}; ph={}
def emit_qk(u,kb):
    j,t=units[u]; qh[u,kb]=len(M); s=SB[u%2]
    for ks in range(4):
        for qs in range(2):
            d=vr(s+8*qs+4*kb,4)
            M.append(I(f'{MF} {d}, {vr(KR+4*((8*u+4*kb+ks)%3),4)}, {vr(QREG(t)+16*qs+4*ks,4,"a")}, {("0" if (u==0 or t==3) else vr(CI,4)) if ks==0 else d}'))
def emit_pv(u,qs):
    j,t=units[u]; ph[u,qs]=len(M); s=SB[u%2]
    for dt in range(8):
        o=vr(OREG(t)+32*qs+4*dt,4)
        M.append(I(f'{MF} {o}, {vr(VF+4*dt,4,"a")}, {vr(s+8*qs,4)}, {"0" if isfirst(j,t) else o}'))
emit_qk(0,0); emit_qk(0,1)
for u in range(NU-1): emit_qk(u+1,0); emit_pv(u,0); emit_qk(u+1,1); emit_pv(u,1)
emit_pv(NU-1,0); emit_pv(NU-1,1)
NG=len(M); streams={}
def put(st,ins,e,d,cost=1):
    if not isinstance(ins,list): ins=[ins]
    streams.setdefault(st,[]).append([ins,e,d,cost])
def U(j,t): return units.index((j,t))
B={j:qh[U(j,2),1]+7 for j in range(16)}
Cb={1:qh[U(13,3),0], 2:qh[U(15,3),1]+7, 3:qh[U(1,3),0], 4:qh[U(3,3),1]+7}
def avail(j,t):
    if t<3: return -1 if j==0 else B[j-1]+1
    if j>=8: return -1
    return Cb[2]+1 if j<4 else Cb[4]+1
def xred(op,x,tmp):
    return [(f'v_mov_b32 v{tmp}, v{x}',1),(f'v_permlane32_swap_b32 v{tmp}, v{x}',3),(f'{op} v{x}, v{x}, v{tmp}',1),
            (f'v_mov_b32 v{tmp}, v{x}',1),(f'v_permlane16_swap_b32 v{tmp}, v{x}',3),(f'{op} v{x}, v{x}, v{tmp}',1)]
for u,(j,t) in enumerate(units):
    s=SB[u%2]; ops=[]
    if u==0:
        o=[f'v_max3_f32 v{CI}, v{s}, v{s+1}, v{s+2}']+[f'v_max3_f32 v{CI}, v{CI}, v{s+k}, v{s+k+1}' for k in range(3,15,2)]+[f'v_max_f32 v{CI}, v{CI}, v{s+15}']
        o+=[z for z,_ in xred('v_max_f32',CI,CI+1)]+[f'v_sub_f32 v{CI+k}, 0, v{CI}' for k in (3,2,1,0)]+[f'v_mov_b32 v{242+k}, 0' for k in range(6)]
        for z in o: put('sm',I(z),15,15)
    if (j,t)==(8,3):
        two=[]
        for qs in range(2):
            l=LREG[t]+qs; nm=NM[t]+qs; b=s+8*qs
            o=[(f'v_max3_f32 v{nm}, v{b}, v{b+1}, v{b+2}',1),(f'v_max3_f32 v{nm}, v{nm}, v{b+3}, v{b+4}',1),(f'v_max3_f32 v{nm}, v{nm}, v{b+5}, v{b+6}',1),(f'v_max_f32 v{nm}, v{nm}, v{b+7}',1)]
            two.append(o+xred('v_max_f32',nm,l)+[(f'v_mul_f32 v{nm}, s22, v{nm}',1),(f'v_mov_b32 v{l}, 0',1)])
        for x,y in zip(*two): ops+=[x,y]
    EO=(0,1,2,3,8,9,10,11,4,5,6,7,12,13,14,15); half=None
    if (j,t)==(8,3) or u in(0,NU-1): EO=tuple(range(16))
    for k in range(-2,17):
        if 0<=k+2<16 and u==0: ops.append((f'v_add_f32 v{s+EO[k+2]}, v{s+EO[k+2]}, v{CI}',1))
        if 0<=k+2<16 and t==3: ops.append((f'v_fma_f32 v{s+EO[k+2]}, v{s+EO[k+2]}, s22, -v{NM[t]+EO[k+2]//8}',1))
        if 0<=k+1<16: ops.append((f'v_exp_f32 v{s+EO[k+1]}, v{s+EO[k+1]}',2))
        if 0<=k-1<16:
            e=EO[k-1]; l=LREG[t]+e//8
            ops.append((f'v_add_f32 v{l}, v{l}, v{s+e}',1))
            if e%2==1:
                ops.append((f'v_cvt_pk_bf16_f32 v{s+(e//8)*8+(e%8)//2}, v{s+e-1}, v{s+e}',1))
                if e==7: half=len(ops)
    e0=qh[u,0]+7+OPT['s0']; d1=e0+32
    if (j,t)==(8,3): e0=qh[u,1]+11
    if u==0: e0=d1=15
    d1=min(d1,ph[u,1]-2)
    tot=sum(c for _,c in ops); acc=0; early=True
    for n,(tx,c) in enumerate(ops):
        d=int(e0+(d1-e0)*(acc+c/2)/tot+0.5); acc+=c
        x=I(tx)
        if early and any(s<=r[1]<s+16 and (r[1]-s)%8>=4 for r in x.r if r[0]=='v'): early=False
        ee=qh[u,0 if early else 1]+11 if u else 15
        d=max(d,ee)
        if n<half: d=min(d,ph[u,0]-2)
        put('sm',x,min(max(ee,d-OPT['sw']),d),d,c)
kwin=T0
for u,(j,t) in enumerate(units):
    base=slot_addr(j,t); w=base&~0xffff
    for f in range(8):
        kb,ks=divmod(f,4)
        if ks<3:
            prev=(u,0) if kb else (u-1,1)
            e=-1 if (u,kb)==(0,0) else max(qh[prev]+2*(ks+1)+1,avail(j,t)); d=max(e,qh[u,kb]+2*ks-OPT['kl'])
        else: e=qh[u,kb]+1; d=e
        if w!=kwin and f<2: put('k',I(f'v_add_u32 v{KA+f}, {(w-kwin)&0xffffffff}, v{KA+f}'),min(e,qh[u-1,1]+2),max(e,d-1))
        put('k',I(f'ds_read_b128 {vr(KR+4*((8*u+f)%3),4)}, v{KA+ks%2} offset:{base-w+(ks//2)*4096+kb*2048}'),e,d)
    kwin=w
vwin=T0
for u,(j,t) in enumerate(units):
    if t in(1,2): continue
    base=slot_addr(j,t)+8192; w=base&~0xffff
    if w!=vwin:
        for dd in range(4): put('v',I(f'v_add_u32 v{VA+dd}, {(w-vwin)&0xffffffff}, v{VA+dd}'),ph[u-1,0]+8,ph[u-1,1]-1)
    for dt in range(8):
        for rr in range(2):
            e=-1 if u==0 else max(ph[u-1,1]+dt,avail(j,t))
            n=2*dt+rr; lo=(ph[u-1,1]+1) if u else 0; hi=ph[u,0]+7-OPT['vl']
            d=max(e,min(ph[u,0]+dt-OPT['vl'], int(lo+(hi-lo)*n/15)))
            put('v',I(f'ds_read_b64_tr_b16 {vr(VF+4*dt+2*rr,2,"a")}, v{VA+dt%4} offset:{base-w+(dt//4)*4096+rr*2048}'),e,d)
    vwin=w
for t in (1,2):
    g=qh[t,0]-1
    for n,x in enumerate(QORD): put('t',q_rd(t,x,190+x%2,t*8192,n==0),g,g)
    for n,x in enumerate(QORD): put('t',q_scale(t,x),g+2*(n//2) if n>1 else g,g+2*(n//2) if n>1 else g,20)
LD=OPT['lead']
for j in range(16):
    g0=B[j-1]+1 if j>0 else 0
    tl=list(range(2,LD+1)) if j==0 else ([j+LD] if j+LD<16 else [])
    n=0
    for jj in tl:
        for k in range(4):
            sp=4 if j==0 else OPT['sp']
            gl=tile_ld(jj,k)
            for x in gl[:-1]: put('y',x,g0+sp*n,g0+2+sp*n)
            put('y',gl[-1],g0+3+sp*n,g0+sp*n+sp-1,OPT['dc']); n+=1
    if j==16-LD:
        for k,x in enumerate(sum(q_dma(3,25,0,VO),[])): put('y',x,g0+1+2*k,g0+2+2*k,OPT['dc'] if x.kind=='vm' else 1)
    if j+1<8:
        for k in range(4): put('x',st_wr(j+1,k,((j+1)%2)*16384,f'W{j+1}'),B[j]-30+6*k,B[j]-26+6*k,5)
    if j<15: put('x',[I('s_barrier',need=[f'W{j+1}',f'T{j+1}'])]+(stamp() if j in(0,3,7,11) else []),B[j],B[j])
for ws,wn in ((OPT.get('w1',-1),OPT.get('n1',3)),(OPT.get('w2',-1),OPT.get('n2',3))):
    if ws<0: continue
    for k,x in enumerate(warm(f'L_w{ws}',wn,252,253,True)): put('w',x,B[ws]+50+k,B[ws]+50+k)
g0=qh[U(15,0),1]+8
put('q',I(f's_sub_u32 s39, s25, 65536'),g0,g0+1)
for kk in range(2):
    put('q',I(f'v_add_u32 v{VO}, s39, v{KA+kk}'),g0+1+12*kk,g0+2+12*kk)
    for n,x in enumerate(range(kk,8,2)): put('q',q_rd(3,x,VO,0,True),g0+2+12*kk+2*n,g0+4+12*kk+2*n,1)
g1=ph[U(15,0),1]-1
def lane(r): return [f'v_mbcnt_lo_u32_b32 v{r}, -1, 0',f'v_mbcnt_hi_u32_b32 v{r}, -1, v{r}']
EAD=lane(OG)+[f'v_lshrrev_b32 v{OW}, 3, v{OG}',f'v_xor_b32 v{OW}, v{OW}, v{OG}',f'v_and_b32 v{OW}, 4, v{OW}',f'v_lshlrev_b32 v{OW}, 2, v{OW}',
    f'v_and_b32 v{ORD}, 15, v{OG}',f'v_lshl_add_u32 v{OW}, v{ORD}, 5, v{OW}',f'v_bfe_u32 v{ORD}, v{OG}, 4, 1',f'v_lshl_add_u32 v{OW}, v{ORD}, 3, v{OW}',f'v_add_u32 v{OW}, s25, v{OW}',
    f'v_bfe_u32 v{ORD}, v{OG}, 1, 3',f'v_lshlrev_b32 v{ORD}, 10, v{ORD}',f'v_add_u32 v{ORD}, s25, v{ORD}',
    f'v_lshlrev_b32 v{OG}, 4, v{OG}',f'v_and_or_b32 v{ORD}, v{OG}, 16, v{ORD}',
    f'v_lshrrev_b32 v{OG}, 3, v{OG}',f'v_and_b32 v{OG}, 0x60, v{OG}',f'v_add_u32 v{ORD}, v{ORD}, v{OG}']+lane(OG)+[f'v_lshlrev_b32 v{OG}, 4, v{OG}','s_lshl_b32 s27, s20, 13']
def epi_ops(t,o,l,tmp,sreg,sk='a',soff=None):
    NT='nt' if OPT.get('snt',1) else ''
    two=[]
    for qs in range(2):
        x=l+qs; y=tmp+qs
        two.append([I(z) for z,_ in xred('v_add_f32',x,y)]+[I(f'v_med3_f32 v{y}, v{x}, s60, 1.0' if 0 else f'v_min_f32 v{y}, s60, v{x}'),I(f'v_max_f32 v{y}, s61, v{y}'),I(f'v_cmp_neq_f32 s[{56+2*qs}:{57+2*qs}], v{y}, v{x}'),I(f'v_rcp_f32 v{x}, v{x}'),I(f's_or_b32 s24, s24, s{56+2*qs}'),I(f's_or_b32 s24, s24, s{57+2*qs}')])
    A=[I('s_mov_b32 s60, 0x4e800000'),I('s_mov_b32 s61, 0x2b800000')]
    for x,y in zip(*two): A+=[x,y]
    Bq=[]
    for qs in range(2):
        for dt in range(8):
            b=o+32*qs+4*dt
            for k in range(4): Bq.append(I(f'v_mul_f32 v{b+k}, v{b+k}, v{l+qs}'))
            for k in range(2): Bq.append(I(f'v_cvt_pk_bf16_f32 v{b+k}, v{b+2*k}, v{b+2*k+1}'))
            Bq.append(I(f'ds_write_b64 v{OW}, {vr(b,2)} offset:{dt*1024+qs*512}'))
    Cq=[]
    for par in range(2):
        for n in range(par,8,2): Cq.append(I(f'ds_read_b128 {vr(sreg+4*n,4,sk)}, v{ORD} offset:{n*128}'))
        Cq.append(I(f'v_xor_b32 v{ORD}, 16, v{ORD}'))
    D=[I(f's_add_u32 s23, s27, {t*32768}') if soff is None else I(f's_mov_b32 s23, s{soff}'),I('s_add_u32 s39, s23, 4096')]
    for n in (0,2,4,6,1,3,5,7): D.append(I(f'buffer_store_dwordx4 {vr(sreg+4*n,4,sk)}, v{OG}, s[16:19], s{23 if n<4 else 39} offen offset:{(n%4)*1024} {NT}'))
    return A,Bq,Cq,D
p83=ph[U(8,3),0]; ew=OPT['ew']
EW={0:(g1+28,p83-4), 1:(p83+12,p83+12+ew), 2:(p83+40+ew,p83+40+2*ew)}
for t in range(3):
    A,Bq,Cq,D=epi_ops(t,OREG(t),LREG[t],NM[t],32)
    e,d=EW[t]
    if t<2:
        ea=ph[U(15,t),1]-1
        if t==0: A[2].need=['WARM']
        for k,x in enumerate(A): put('a',x,ea,ea+1+k//2)
        if t==0:
            for k,x in enumerate(EAD): put('a',I(x),ea+12,ea+14+k//2)
    else:
        for k,x in enumerate(A): put('e',x,e-18,e-14+k//2)
    for k,x in enumerate(Bq): put('e',x,e,int(e+(d-e)*(k+1)/len(Bq)),3 if x.kind=='ds' else 1)
    for k,x in enumerate(Cq): put('e',x,d,d+1+k)
    for k,x in enumerate(D): put('f',x,d+16+2*k,d+17+2*k,3 if x.kind=='vm' else 1)
put('x',I(f'v_add_u32 v{WA}, {(-T0)&0xffffffff}, v{WA}'),Cb[1]-4,Cb[1]-1)
put('x',[I('s_barrier')]+stamp(),Cb[1],Cb[1])
for n in range(16): put('x',st_wr(n//4,n%4,(n//4)*16384,'X0'),Cb[1]+1+4*n,Cb[1]+3+4*n,5)
put('x',I('s_barrier',need=['X0']),Cb[2],Cb[2])
put('x',I(f'v_add_u32 v{WA}, 0x10000, v{WA}'),Cb[3]-4,Cb[3]-1)
put('x',I('s_barrier'),Cb[3],Cb[3])
for n in range(16): put('x',st_wr(4+n//4,n%4,(n//4)*16384,'X1'),Cb[3]+1+4*n,Cb[3]+3+4*n,5)
put('x',[I('s_barrier',need=['X1'])]+stamp(),Cb[4],Cb[4])
for st,L in streams.items():
    for k in range(len(L)-2,-1,-1): L[k][2]=min(L[k][2],L[k+1][2]); L[k][1]=min(L[k][1],L[k][2]) if st in('sm',) else L[k][1]
    for k in range(len(L)): assert L[k][1]<=L[k][2], (st,k,L[k][0][0].text,L[k][1],L[k][2])
body=[]; pos={s:0 for s in streams}; carry=0.0; hist=[]
p2=ph[U(15,0),1]
for g in range(-1,NG):
    if g>=0: body.append(M[g])
    used=0; mn=OPT['b1'] if g<p2 else OPT['b2']; pk=[]; vw=set(); free=1
    def cost(it): return 0 if (free and len(it[0])==1 and it[0][0].kind=='salu') else it[3]
    while True:
        c=sorted((streams[s][pos[s]][2],s) for s in streams if pos[s]<len(streams[s]) and streams[s][pos[s]][1]<=g)
        if not c: break
        if c[0][0]>g:
            c=[x for x in c if not(streams[x[1]][pos[x[1]]][0][0].kind in('ds','vm') and vw&set(streams[x[1]][pos[x[1]]][0][0].r))]
            fit=[x for x in c if used+cost(streams[x[1]][pos[x[1]]])<=mn]
            if fit: c=fit
            elif used>=mn or not c: break
        d,s=c[0]; it=streams[s][pos[s]]; x=it[0][0]
        k={'salu':0,'ds':1,'vm':1}.get(x.kind,2)
        if (vw&set(x.r)) or g<100: k=2
        if x.op=='s_barrier': k=1.5
        used+=cost(it)
        if x.kind=='salu': free=0
        for y in it[0]:
            if y.kind=='valu' or k==2: vw|=set(y.w)
        pk.append((k,len(pk),it[0])); pos[s]+=1
    pk.sort(key=lambda z:z[:2])
    pre=I('s_nop 0'); pre.kind='pseudo'; pre.need=[]
    if g+1<NG: pre.r=list(M[g+1].r)
    for k,_,L in pk:
        for y in L:
            pre.r+=y.r; pre.need+=(y.need or [])
    if g>=100: body.append(pre)
    for k,_,L in pk: body+=L
    hist.append(used)
print('underfilled',sum(1 for h in hist[100:] if h<2),'excess',sum(h-2 for h in hist[100:p2] if h>2),sum(h-2 for h in hist[p2:] if h>2))
assert all(pos[s]==len(streams[s]) for s in streams)
A,Bq,Cq,D=epi_ops(3,0,LREG[3],NM[3],64,'v')
log=[]
main,nn,nw=finalize(P+body+stamp()+A+Bq+Cq+D+stamp(),OPT['merge'],log)
print('instrs',len(main),'nop states',nn,'waits',nw,'gap cost p1 avg %.2f max %d; p2 avg %.2f max %d'%(sum(hist[18:p2])/(p2-18),max(hist[90:p2]),sum(hist[p2:])/(NG-p2),max(hist[p2:])))
if OPT.get('v'): print(log)
out=[x.text for x in main]
if OPT['stamps']:
    out+=['s_waitcnt vmcnt(0)']+[x.text for x in stamp()]
    out+=['s_load_dwordx2 s[28:29], s[0:1], 40','s_lshl_b32 s30, s2, 2','s_add_u32 s30, s30, s20',f's_mul_i32 s30, s30, {nst[0]*8}','s_waitcnt lgkmcnt(0)',
          's_add_u32 s28, s28, s30','s_addc_u32 s29, s29, 0','v_mov_b32 v2, 0']
    for k in range(nst[0]): out+=[f'v_mov_b32 v4, s{64+2*k}',f'v_mov_b32 v5, s{65+2*k}',f'global_store_dwordx2 v2, v[4:5], s[28:29] offset:{8*k}','s_nop 1']
    print('stamps',nst[0])
from fallback import fallback
if not OPT['nofb']: out+=['s_cmp_eq_u32 s24, 0','s_cbranch_scc1 L_end']+fallback(globals())
ref=open('cdna_kernels/'+NAME+'.s.ref').read()
txt=ref.split('; @launch')[0]+'; @launch grid=(256,1,1) block=(256,1,1) lds=163840\n.amdgcn_target "amdgcn-amd-amdhsa--gfx950"\n.text\n.globl '+NAME+'_kernel\n.p2align 8\n.type '+NAME+'_kernel,@function\n'+NAME+'_kernel:\n'
txt+='\n'.join(('' if x.endswith(':') else '    ')+x for x in out)+'\nL_end:\n    s_endpgm'
open(sys.argv[1],'w').write(txt+ref.split('s_endpgm')[1].replace('next_free_vgpr 256','next_free_vgpr 512'))
```
